```python
import torch

def _softmax(x, axis=-1):
    return torch.softmax(x, dim=axis)

def _gelu(x):
    return torch.nn.functional.gelu(x, approximate='tanh')

def _silu(x):
    return torch.nn.functional.silu(x)

def _sigmoid(x):
    return torch.sigmoid(x)

def _layernorm(x, axis=-1, eps=1e-05):
    m = x.mean(dim=axis, keepdim=True)
    v = x.var(dim=axis, keepdim=True, unbiased=False)
    return (x - m) / torch.sqrt(v + eps)

def _scatter_add(tgt, idx, src, axis=0):
    return tgt.clone().index_add_(axis, idx, src)

def _segment_sum(src, seg, n):
    out = torch.zeros((n,) + src.shape[1:], dtype=src.dtype)
    return out.index_add_(0, seg, src)

def _pad(x, pw):
    flat = tuple((v for pair in reversed(pw) for v in pair))
    return torch.nn.functional.pad(x, flat)
kernel_name = 'standalone__autoregressive_conv_wavenet__speech'

def setup_inputs():

    _w = lambda a: (lambda t: t.to(torch.bfloat16) if t.is_floating_point() else t)(torch.as_tensor(a))
    B, T, D, K = (2, 4000, 512, 15)
    return {'x': _w((lambda *s: torch.randn(*s, dtype=torch.bfloat16) * 0.1)(B, T, D)), 'w': _w((lambda *s: torch.randn(*s, dtype=torch.bfloat16) * 0.1)(K, D, 2 * D)), 'w_o': _w((lambda *s: torch.randn(*s, dtype=torch.bfloat16) * 0.05)(D, D))}

def reference(x, w, w_o):
    B, T, D = x.shape
    K = w.shape[0]
    dil = 2
    pad = (K - 1) * dil
    xp = _pad(x, ((0, 0), (pad, 0), (0, 0)))
    h = torch.einsum('btc,cd->btd', xp[:, pad:pad + T, :], w[0])
    for i in range(1, K):
        off = pad - i * dil
        h = h + torch.einsum('btc,cd->btd', xp[:, off:off + T, :], w[i])
    f = h[..., :D].clone()
    g = h[..., D:].clone()
    z = torch.tanh(f) * _sigmoid(g)
    return z @ w_o
```

```python
import sys, struct
def f2u(x): return struct.unpack('<I', struct.pack('<f', x))[0]
def kd(n, vg=128):
    return f'''.amdhsa_kernel {n}
  .amdhsa_next_free_vgpr {vg}
  .amdhsa_next_free_sgpr 102
  .amdhsa_accum_offset {vg}
  .amdhsa_group_segment_fixed_size 0
  .amdhsa_kernarg_size 48
  .amdhsa_user_sgpr_count 2
  .amdhsa_user_sgpr_kernarg_segment_ptr 1
  .amdhsa_system_sgpr_workgroup_id_x 1
.end_amdhsa_kernel'''
def gen(scale=1.0):
    L=[]; A=L.append
    A("; @launch kernel=conv_kernel grid=(4000,1,1) block=(64,1,1) lds=0")
    A("; @launch kernel=proj_kernel grid=(4000,1,1) block=(64,1,1) lds=0")
    A('.amdgcn_target "amdgcn-amd-amdhsa--gfx950"\n.text')
    n="conv_kernel"
    A(f'.globl {n}\n.p2align 8\n.type {n},@function\n{n}:')
    A('s_cmp_ge_u32 s2, 4000\ns_cbranch_scc1 L_end1')
    A('s_load_dwordx4 s[4:7], s[0:1], 0\ns_load_dwordx2 s[20:21], s[0:1], 40\ns_waitcnt lgkmcnt(0)')
    A('s_mov_b32 s8, s4\ns_mov_b32 s9, s5\ns_mov_b32 s10, 8192000\ns_mov_b32 s11, 0x20000')
    A('s_mov_b32 s12, s6\ns_mov_b32 s13, s7\ns_mov_b32 s14, 15728640\ns_mov_b32 s15, 0x20000')
    A('s_mov_b32 s16, s20\ns_mov_b32 s17, s21\ns_mov_b32 s18, 8192000\ns_mov_b32 s19, 0x20000')
    A('s_lshr_b32 s22, s2, 5\ns_and_b32 s23, s2, 31')
    A('s_lshl_b32 s24, s22, 6')
    A('v_and_b32 v1, 15, v0\nv_lshrrev_b32 v2, 4, v0')
    for b in range(4):
        A(f'v_add_u32 v{4+b}, s24, v1\nv_add_u32 v{4+b}, {16*b}, v{4+b}')
        A(f'v_subrev_u32 v{8+b}, 4000, v{4+b}\nv_cmp_gt_u32 vcc, 4000, v{4+b}\ns_nop 1\nv_cndmask_b32 v{8+b}, v{8+b}, v{4+b}, vcc')
    A('s_lshl_b32 s25, s23, 5\nv_lshlrev_b32 v3, 14, v2\nv_lshl_add_u32 v3, v1, 1, v3\nv_add_u32 v3, s25, v3')
    for i in range(32): A(f'v_mov_b32 v{64+i}, 0')
    A('s_mov_b32 s26, 0')
    A('L_tap:')
    A('s_lshl_b32 s27, s26, 1')
    for b in range(4):
        A(f'v_subrev_u32 v{12+b}, s27, v{4+b}\nv_lshlrev_b32 v{12+b}, 10, v{12+b}\nv_lshl_add_u32 v{12+b}, v2, 4, v{12+b}')
        A(f'v_cmp_gt_u32 vcc, s27, v{8+b}\nv_mov_b32 v16, 0x7f000000\ns_nop 1\nv_cndmask_b32 v{12+b}, v{12+b}, v16, vcc')
    A('s_mov_b32 s28, 0')
    A('L_c:')
    A('s_lshl_b32 s29, s28, 6')
    A('s_lshl_b32 s30, s26, 20\ns_lshl_b32 s31, s28, 16\ns_add_u32 s30, s30, s31')
    for b in range(4):
        A(f'buffer_load_dwordx4 v[{20+4*b}:{23+4*b}], v{12+b}, s[8:11], s29 offen')
    for j in range(8):
        A(f's_add_u32 s31, s30, {j*2048}')
        A(f'buffer_load_ushort v{44+j}, v3, s[12:15], s31 offen')
        A(f'buffer_load_ushort v{52+j}, v3, s[12:15], s31 offen offset:1024')
    A('s_waitcnt vmcnt(0)')
    for j in range(4):
        A(f'v_lshl_or_b32 v{36+j}, v{45+2*j}, 16, v{44+2*j}')
        A(f'v_lshl_or_b32 v{40+j}, v{53+2*j}, 16, v{52+2*j}')
    A('s_nop 1')
    for b in range(4):
        A(f'v_mfma_f32_16x16x32_bf16 v[{64+4*b}:{67+4*b}], v[36:39], v[{20+4*b}:{23+4*b}], v[{64+4*b}:{67+4*b}]')
        A(f'v_mfma_f32_16x16x32_bf16 v[{80+4*b}:{83+4*b}], v[40:43], v[{20+4*b}:{23+4*b}], v[{80+4*b}:{83+4*b}]')
    A('s_add_u32 s28, s28, 1\ns_cmp_lt_u32 s28, 16\ns_cbranch_scc1 L_c')
    A('s_add_u32 s26, s26, 1\ns_cmp_lt_u32 s26, 15\ns_cbranch_scc1 L_tap')
    A('s_nop 15')
    A(f's_mov_b32 s40, {f2u(2*1.4426950408889634)}\ns_mov_b32 s41, {f2u(-1.4426950408889634)}')
    for b in range(4):
        for r in range(4):
            f=64+4*b+r; g=80+4*b+r
            A(f'v_mul_f32 v{f}, s40, v{f}\nv_mul_f32 v{g}, s41, v{g}\nv_exp_f32 v{f}, v{f}\nv_exp_f32 v{g}, v{g}\ns_nop 0')
            A(f'v_add_f32 v{f}, 1.0, v{f}\nv_add_f32 v{g}, 1.0, v{g}\nv_rcp_f32 v{f}, v{f}\nv_rcp_f32 v{g}, v{g}\ns_nop 0')
            A(f'v_fma_f32 v{f}, v{f}, -2.0, 1.0\nv_mul_f32 v{f}, v{f}, v{g}')
        A(f'v_cvt_pk_bf16_f32 v20, v{64+4*b}, v{65+4*b}\nv_cvt_pk_bf16_f32 v21, v{66+4*b}, v{67+4*b}')
        A(f'v_lshlrev_b32 v22, 10, v{4+b}\nv_lshl_add_u32 v22, v2, 3, v22\nv_add_u32 v22, s25, v22')
        A('buffer_store_dwordx2 v[20:21], v22, s[16:19], 0 offen\ns_waitcnt vmcnt(0)')
    A('L_end1:\ns_endpgm')
    n="proj_kernel"
    A(f'.globl {n}\n.p2align 8\n.type {n},@function\n{n}:')
    A('s_cmp_ge_u32 s2, 4000\ns_cbranch_scc1 L_end2')
    A('s_load_dwordx4 s[4:7], s[0:1], 16\ns_load_dwordx2 s[20:21], s[0:1], 40\ns_waitcnt lgkmcnt(0)')
    A('s_mov_b32 s8, s20\ns_mov_b32 s9, s21\ns_mov_b32 s10, 8192000\ns_mov_b32 s11, 0x20000')
    A('s_mov_b32 s12, s4\ns_mov_b32 s13, s5\ns_mov_b32 s14, 524288\ns_mov_b32 s15, 0x20000')
    A('s_mov_b32 s16, s6\ns_mov_b32 s17, s7\ns_mov_b32 s18, 8192000\ns_mov_b32 s19, 0x20000')
    A('s_lshr_b32 s22, s2, 5\ns_and_b32 s23, s2, 31\ns_lshl_b32 s24, s22, 6')
    A('v_and_b32 v1, 15, v0\nv_lshrrev_b32 v2, 4, v0')
    for b in range(4):
        A(f'v_add_u32 v{4+b}, s24, v1\nv_add_u32 v{4+b}, {16*b}, v{4+b}')
        A(f'v_lshlrev_b32 v{12+b}, 10, v{4+b}\nv_lshl_add_u32 v{12+b}, v2, 4, v{12+b}')
    A('s_lshl_b32 s25, s23, 5\nv_lshlrev_b32 v3, 13, v2\nv_lshl_add_u32 v3, v1, 1, v3\nv_add_u32 v3, s25, v3')
    for i in range(16): A(f'v_mov_b32 v{64+i}, 0')
    A('s_mov_b32 s28, 0\nL_c2:')
    A('s_lshl_b32 s29, s28, 6\ns_lshl_b32 s30, s28, 15')
    for b in range(4):
        A(f'buffer_load_dwordx4 v[{20+4*b}:{23+4*b}], v{12+b}, s[8:11], s29 offen')
    for j in range(8):
        A(f's_add_u32 s31, s30, {j*1024}')
        A(f'buffer_load_ushort v{44+j}, v3, s[12:15], s31 offen')
    A('s_waitcnt vmcnt(0)')
    for j in range(4):
        A(f'v_lshl_or_b32 v{36+j}, v{45+2*j}, 16, v{44+2*j}')
    A('s_nop 1')
    for b in range(4):
        A(f'v_mfma_f32_16x16x32_bf16 v[{64+4*b}:{67+4*b}], v[36:39], v[{20+4*b}:{23+4*b}], v[{64+4*b}:{67+4*b}]')
    A('s_add_u32 s28, s28, 1\ns_cmp_lt_u32 s28, 16\ns_cbranch_scc1 L_c2')
    A('s_nop 15')
    A(f's_mov_b32 s40, {f2u(scale)}')
    for b in range(4):
        for r in range(4): A(f'v_mul_f32 v{64+4*b+r}, s40, v{64+4*b+r}')
        A(f'v_cvt_pk_bf16_f32 v20, v{64+4*b}, v{65+4*b}\nv_cvt_pk_bf16_f32 v21, v{66+4*b}, v{67+4*b}')
        A(f'v_lshlrev_b32 v22, 10, v{4+b}\nv_lshl_add_u32 v22, v2, 3, v22\nv_add_u32 v22, s25, v22')
        A('buffer_store_dwordx2 v[20:21], v22, s[16:19], 0 offen\ns_waitcnt vmcnt(0)')
    A('L_end2:\ns_endpgm')
    A('.section .rodata,"a"\n.p2align 6')
    A(kd("conv_kernel")); A('.p2align 6'); A(kd("proj_kernel"))
    return "\n".join(L)+"\n"
if __name__=="__main__":
    open("simple.s","w").write(gen(1.0))
    for i,sc in enumerate([1.01,1.02,1.028]):
        open(f"simple_s{i}.s","w").write(gen(sc))
```

```python
import sys
def gen(shape, iters, nthreads=256):
    L=[]
    A=L.append
    A(f"; @launch grid=(256,1,1) block=({nthreads},1,1) lds=0")
    A('.amdgcn_target "amdgcn-amd-amdhsa--gfx950"')
    A('.text')
    n="standalone__autoregressive_conv_wavenet__speech_kernel"
    A(f'.globl {n}\n.p2align 8\n.type {n},@function\n{n}:')
    A('s_cmp_ge_u32 s2, 256\ns_cbranch_scc1 L_end')
    A('s_load_dwordx2 s[4:5], s[0:1], 8\ns_load_dwordx2 s[6:7], s[0:1], 40\ns_waitcnt lgkmcnt(0)')
    A('s_mov_b32 s8, s4\ns_mov_b32 s9, s5\ns_mov_b32 s10, 15728640\ns_mov_b32 s11, 0x20000')
    A('s_mov_b32 s12, s6\ns_mov_b32 s13, s7\ns_mov_b32 s14, 0x10000000\ns_mov_b32 s15, 0x20000')
    A('s_mul_i32 s3, s2, 49152')
    A('v_lshlrev_b32 v1, 4, v0\nv_add_u32 v1, s3, v1')
    nf=12
    for i in range(nf):
        A(f's_mov_b32 s16, {i*nthreads*16}')
        A(f'buffer_load_dwordx4 v[{8+4*i}:{11+4*i}], v1, s[8:11], s16 offen')
    nacc = 128
    for i in range(nacc): A(f'v_accvgpr_write_b32 a{i}, 0')
    A('s_waitcnt vmcnt(0)')
    A('s_barrier')
    A('s_memtime s[20:21]\ns_memrealtime s[22:23]\ns_waitcnt lgkmcnt(0)')
    A(f's_mov_b32 s17, {iters}')
    A('L_loop:')
    if shape==32:
        for b in range(4):
            for a in range(8):
                A(f'v_mfma_f32_32x32x16_bf16 a[{16*a}:{16*a+15}], v[{8+4*(8+b)}:{11+4*(8+b)}], v[{8+4*((a+b)%8)}:{11+4*((a+b)%8)}], a[{16*a}:{16*a+15}]')
    else:
        for b in range(2):
            for a in range(32):
                fa=(a%8+b)%8; fb=8+(a//8)
                A(f'v_mfma_f32_16x16x32_bf16 a[{4*a}:{4*a+3}], v[{8+4*fb}:{11+4*fb}], v[{8+4*fa}:{11+4*fa}], a[{4*a}:{4*a+3}]')
    A('s_sub_u32 s17, s17, 1\ns_cmp_lg_u32 s17, 0\ns_cbranch_scc1 L_loop')
    A('s_memtime s[24:25]\ns_memrealtime s[26:27]\ns_waitcnt lgkmcnt(0)')
    A('s_sub_u32 s24, s24, s20\ns_sub_u32 s26, s26, s22')
    A('v_mov_b32 v2, s24\nv_mov_b32 v3, s26\nv_mov_b32 v4, s22\nv_accvgpr_read_b32 v5, a0')
    A('s_lshl_b32 s3, s2, 4\nv_mov_b32 v1, s3')
    A('v_cmp_eq_u32 vcc, 0, v0\ns_and_saveexec_b64 s[30:31], vcc\ns_cbranch_execz L_end')
    A('buffer_store_dwordx4 v[2:5], v1, s[12:15], 0 offen')
    A('s_waitcnt vmcnt(0)')
    A('L_end:\ns_endpgm')
    A(f'''.section .rodata,"a"
.p2align 6
.amdhsa_kernel {n}
  .amdhsa_next_free_vgpr 256
  .amdhsa_next_free_sgpr 102
  .amdhsa_accum_offset 128
  .amdhsa_group_segment_fixed_size 0
  .amdhsa_kernarg_size 48
  .amdhsa_user_sgpr_count 2
  .amdhsa_user_sgpr_kernarg_segment_ptr 1
  .amdhsa_system_sgpr_workgroup_id_x 1
.end_amdhsa_kernel''')
    return "\n".join(L)+"\n"
if __name__=="__main__":
    for shape in (16,32):
        for iters in (32,64,128,1024):
            open(f"mb_mfma_{shape}_{iters}.s","w").write(gen(shape,iters))
```

```python
import simple, mb_mfma, re
base = simple.gen(1.0)
N="standalone__autoregressive_conv_wavenet__speech_kernel"
def split(src):
    lines=src.split("\n")
    launch=[l for l in lines if l.startswith("; @launch")]
    rest="\n".join(l for l in lines if not l.startswith("; @launch"))
    i=rest.index('.text')+5; j=rest.index('.section .rodata')
    return launch, rest[i:j], rest[j:].split('\n',1)[1]
def combine(parts):
    out=[]
    for p in parts: out+=p[0]
    out.append('.amdgcn_target "amdgcn-amd-amdhsa--gfx950"\n.text')
    seen=set()
    for p in parts:
        if p[1] not in seen: out.append(p[1]); seen.add(p[1])
    out.append('.section .rodata,"a"')
    seen=set()
    for p in parts:
        if p[2] not in seen: out.append(p[2]); seen.add(p[2])
    return "\n".join(out)+"\n"
def rename(src,new):
    src=src.replace(N,new)
    src=src.replace("; @launch grid","; @launch kernel="+new+" grid")
    src=re.sub(r'\bL_(\w+)', lambda m: f'L_{new}_{m.group(1)}', src)
    return src
B=split(base)
empty=(["; @launch kernel=empty_kernel grid=(256,1,1) block=(256,1,1) lds=0"], ".globl empty_kernel\n.p2align 8\n.type empty_kernel,@function\nempty_kernel:\ns_endpgm\n", ".p2align 6\n"+simple.kd("empty_kernel"))
if __name__=="__main__":
    open("c_a.s","w").write(combine([B]))
    open("c_b.s","w").write(combine([empty]*32+[B]))
    open("c_c.s","w").write(combine([split(rename(mb_mfma.gen(16,64),"mf_kernel")),B]))
    open("c_d.s","w").write(combine([split(rename(mb_mfma.gen(32,64),"mf_kernel")),B]))
    open("c_e.s","w").write(combine([split(rename(mb_mfma.gen(16,128),"mf_kernel")),B]))
    open("c_f.s","w").write(combine([B]))
```

```python
import simple, combo
T_OFF=64<<20
def kd(n,vg=256):
    return ".p2align 6\n"+simple.kd(n,vg)
def amp(name, factor, nwg=256):
    t=f'''.globl {name}
.p2align 8
.type {name},@function
{name}:
s_cmp_ge_u32 s2, 1
s_cbranch_scc1 L_{name}_end
s_load_dwordx2 s[6:7], s[0:1], 40
s_waitcnt lgkmcnt(0)
s_add_u32 s6, s6, {T_OFF}
s_addc_u32 s7, s7, 0
s_load_dwordx2 s[10:11], s[6:7], 0
s_waitcnt lgkmcnt(0)
s_mov_b32 s12, s10
s_mov_b32 s13, 0
s_mov_b32 s14, 0
s_mov_b32 s15, 0
L_{name}_l:
s_load_dwordx2 s[10:11], s[6:7], s15
s_waitcnt lgkmcnt(0)
s_sub_u32 s10, s10, s12
s_sub_u32 s11, s11, s12
s_min_i32 s13, s13, s10
s_max_i32 s14, s14, s11
s_add_u32 s15, s15, 8
s_cmp_lt_u32 s15, {nwg*8}
s_cbranch_scc1 L_{name}_l
s_sub_u32 s14, s14, s13
s_min_u32 s14, s14, 20000
s_mul_i32 s14, s14, {factor}
s_memrealtime s[20:21]
s_waitcnt lgkmcnt(0)
L_{name}_s:
s_memrealtime s[22:23]
s_waitcnt lgkmcnt(0)
s_sub_u32 s24, s22, s20
s_cmp_lt_u32 s24, s14
s_cbranch_scc1 L_{name}_s
L_{name}_end:
s_endpgm
'''
    return ([f"; @launch kernel={name} grid=(1,1,1) block=(64,1,1) lds=0"], t, kd(name,32))
def probe(name, nrw=15, nrx=8, nwr=0, nwg=256, wsc=''):
    L=[];A=L.append
    A(f'.globl {name}\n.p2align 8\n.type {name},@function\n{name}:')
    A(f's_cmp_ge_u32 s2, {nwg}\ns_cbranch_scc1 L_{name}_end')
    A('s_memrealtime s[60:61]')
    A('s_load_dwordx4 s[4:7], s[0:1], 0\ns_load_dwordx2 s[20:21], s[0:1], 40\ns_waitcnt lgkmcnt(0)')
    A('s_mov_b32 s8, s4\ns_mov_b32 s9, s5\ns_mov_b32 s10, 8192000\ns_mov_b32 s11, 0x20000')
    A('s_mov_b32 s12, s6\ns_mov_b32 s13, s7\ns_mov_b32 s14, 15728640\ns_mov_b32 s15, 0x20000')
    A(f's_add_u32 s16, s20, {T_OFF}\ns_addc_u32 s17, s21, 0\ns_mov_b32 s18, 0x8000000\ns_mov_b32 s19, 0x20000')
    A('v_lshlrev_b32 v1, 4, v0')
    r=8
    A(f's_mul_i32 s22, s2, {nrw*4096}')
    for i in range(nrw):
        A(f'buffer_load_dwordx4 v[{r}:{r+3}], v1, s[12:15], s22 offen\ns_add_u32 s22, s22, 4096'); r+=4
    A(f's_mul_i32 s22, s2, {nrx*4096}')
    for i in range(nrx):
        A(f'buffer_load_dwordx4 v[{r}:{r+3}], v1, s[8:11], s22 offen\ns_add_u32 s22, s22, 4096'); r+=4
    A('s_waitcnt vmcnt(0)')
    A(f's_mul_i32 s22, s2, {nwr*4096}\ns_add_u32 s22, s22, 0x100000')
    for i in range(nwr):
        A(f'buffer_store_dwordx4 v[8:11], v1, s[16:19], s22 offen {wsc}\ns_add_u32 s22, s22, 4096')
    A('s_waitcnt vmcnt(0)\ns_barrier')
    A('s_memrealtime s[64:65]\ns_waitcnt lgkmcnt(0)')
    A('v_mov_b32 v2, s60\nv_mov_b32 v3, s64\ns_lshl_b32 s3, s2, 3\nv_mov_b32 v1, s3')
    A(f'v_cmp_eq_u32 vcc, 0, v0\ns_and_saveexec_b64 s[30:31], vcc\ns_cbranch_execz L_{name}_end')
    A('buffer_store_dwordx2 v[2:3], v1, s[16:19], 0 offen\ns_waitcnt vmcnt(0)')
    A(f'L_{name}_end:\ns_endpgm\n')
    return ([f"; @launch kernel={name} grid=({nwg},1,1) block=(256,1,1) lds=0"], "\n".join(L), kd(name,128))
if __name__=="__main__":
    B=combo.B
    F=32
    P=probe("p1_kernel")
    open("pr_0.s","w").write(combo.combine([P, amp("amp_kernel",0), B]))
    open("pr_1.s","w").write(combo.combine([P, amp("amp_kernel",F), B]))
    open("pr_2.s","w").write(combo.combine([P, P, amp("amp_kernel",F), B]))
    open("pr_3.s","w").write(combo.combine([probe("p3_kernel",1,0), amp("amp_kernel",F), P, B]))
    open("pr_4.s","w").write(combo.combine([probe("p4_kernel",0,0,32), amp("amp_kernel",F), P, B]))
    open("pr_5.s","w").write(combo.combine([probe("p5_kernel",0,0,0), amp("amp_kernel",F), P, B]))
```

```python
import probe, combo
B=combo.B; F=32
P=probe.probe("p1_kernel")
A=probe.amp("amp_kernel",F)
p4=probe.probe("p4_kernel",0,0,32,wsc='sc1')
open("pr_0.s","w").write(combo.combine([P, probe.amp("amp_kernel",0), B]))
open("pr_1.s","w").write(combo.combine([p4, A, P, B]))
open("pr_2.s","w").write(combo.combine([p4, p4, A, P, B]))
open("pr_3.s","w").write(combo.combine([probe.probe("p6_kernel",15,8,46,wsc='sc1'), A, B]))
open("pr_4.s","w").write(combo.combine([probe.probe("p7_kernel",0,8,10,wsc='sc1'), A, P, B]))
q=probe.probe("p8_kernel")
q=(q[0], q[1].replace("s_memrealtime s[60:61]","s_memrealtime s[60:61]\ns_xor_b32 s2, s2, 5"), q[2])
open("pr_5.s","w").write(combo.combine([P, q, A, B]))
```

```python
from common import *
def gen(slotA, nA, fieldA, opA, factor, slotB=0, nB=256, fieldB=0, name='amp_kernel'):
    A=Asm(); head(A,name); P=name
    A(f'''s_cmp_ge_u32 s2, 1
s_cbranch_scc1 L_{P}_end
s_load_dwordx2 s[6:7], s[0:1], 40
s_waitcnt lgkmcnt(0)
s_add_u32 s8, s6, {T_OFF}
s_addc_u32 s9, s7, 0
s_mov_b32 s10, 0x100000
s_mov_b32 s11, 0x20000
s_load_dword s12, s[8:9], {slotB*65536+fieldB*4}''')
    for j in range(4):
        A(f'v_add_u32 v1, {64*j}, v0\nv_min_u32 v2, {nA-1}, v1\nv_min_u32 v3, {nB-1}, v1\nv_lshlrev_b32 v2, 5, v2\nv_lshlrev_b32 v3, 5, v3')
        A(f's_mov_b32 s13, {slotA*65536+fieldA*4}\ns_mov_b32 s14, {slotB*65536+fieldB*4}')
        A(f'buffer_load_dword v{8+j}, v2, s[8:11], s13 offen\nbuffer_load_dword v{12+j}, v3, s[8:11], s14 offen')
    A('s_waitcnt vmcnt(0) lgkmcnt(0)')
    for j in range(8): A(f'v_subrev_u32 v{8+j}, s12, v{8+j}')
    A(f'v_{opA}_i32 v8, v8, v9\nv_{opA}_i32 v10, v10, v11\nv_{opA}_i32 v8, v8, v10')
    A('v_min_i32 v12, v12, v13\nv_min_i32 v14, v14, v15\nv_min_i32 v12, v12, v14\ns_nop 1')
    A('v_readlane_b32 s20, v8, 0\nv_readlane_b32 s21, v12, 0')
    for l in range(1,64):
        A(f'v_readlane_b32 s22, v8, {l}\nv_readlane_b32 s23, v12, {l}\ns_nop 0\ns_{opA}_i32 s20, s20, s22\ns_min_i32 s21, s21, s23')
    A(f'''s_sub_u32 s14, s20, s21
s_min_u32 s14, s14, 20000
s_mul_i32 s14, s14, {factor}
s_memrealtime s[20:21]
s_waitcnt lgkmcnt(0)
L_{P}_s:
s_memrealtime s[22:23]
s_waitcnt lgkmcnt(0)
s_sub_u32 s24, s22, s20
s_cmp_lt_u32 s24, s14
s_cbranch_scc1 L_{P}_s
L_{P}_end:
s_endpgm''')
    return dict(name=name, launch=f'; @launch kernel={name} grid=(1,1,1) block=(64,1,1) lds=0', text=A.text(), kd=kd(name,32))
```

```python
import struct
def f2u(x): return struct.unpack('<I', struct.pack('<f', x))[0]
XH_OFF = 0
XH_BYTES = 32*2*16*10*1024
HH_OFF = 16<<20
HT = 131072
HH_BYTES = 160*HT
WO_OFF = 44<<20
WC_OFF = 45<<20
T_OFF = 64<<20
class Asm:
    def __init__(self): self.L=[]
    def __call__(self, s):
        for l in s.split('\n'):
            l=l.strip()
            if l: self.L.append(l)
    def text(self): return "\n".join(self.L)+"\n"
def head(A, name):
    A(f'.globl {name}\n.p2align 8\n.type {name},@function\n{name}:')
def kd(name, vgpr, accum=None, sgpr=102):
    accum = accum or vgpr
    return f'''.p2align 6
.amdhsa_kernel {name}
  .amdhsa_next_free_vgpr {vgpr}
  .amdhsa_next_free_sgpr {sgpr}
  .amdhsa_accum_offset {accum}
  .amdhsa_group_segment_fixed_size 0
  .amdhsa_kernarg_size 48
  .amdhsa_user_sgpr_count 2
  .amdhsa_user_sgpr_kernarg_segment_ptr 1
  .amdhsa_system_sgpr_workgroup_id_x 1
.end_amdhsa_kernel
'''
def combine(parts, header=""):
    out=[header] if header else []
    for p in parts: out.append(p['launch'])
    out.append('.amdgcn_target "amdgcn-amd-amdhsa--gfx950"\n.text')
    seen=[]
    for p in parts:
        if p['name'] not in seen: out.append(p['text']); seen.append(p['name'])
    out.append('.section .rodata,"a"')
    seen=[]
    for p in parts:
        if p['name'] not in seen: out.append(p['kd']); seen.append(p['name'])
    return "\n".join(out)
def vr(b,n=4): return f'v[{b}:{b+n-1}]'
def stamp_begin(A):
    A('s_memrealtime s[90:91]')
def stamp_mid(A, i):
    A(f's_memrealtime s[{92+2*i}:{93+2*i}]')
def stamp_end(A, wsreg, slot, label, nwg_off=0):
    A(f'''s_memrealtime s[98:99]
s_waitcnt lgkmcnt(0)
s_add_u32 s84, s{wsreg}, {T_OFF + slot*65536}
s_addc_u32 s85, s{wsreg+1}, 0
s_mov_b32 s86, 0x10000
s_mov_b32 s87, 0x20000
v_mov_b32 v0, s90
v_mov_b32 v1, s92
v_mov_b32 v2, s94
v_mov_b32 v3, s96
v_mov_b32 v4, s98
v_mov_b32 v5, s88
v_mov_b32 v6, 0
v_mov_b32 v7, 0
s_lshl_b32 s83, s2, 5
v_mov_b32 v8, s83
s_mov_b64 exec, 1
buffer_store_dwordx4 v[0:3], v8, s[84:87], 0 offen
buffer_store_dwordx4 v[4:7], v8, s[84:87], 0 offen offset:16
s_waitcnt vmcnt(0)''')
```

```python
from common import *
LDS=56*1024
def gen(name='k1_kernel', diag=False, xsc='', prefetch=True):
    A=Asm(); head(A,name); P=name
    A(f's_cmp_ge_u32 s2, 256\ns_cbranch_scc1 L_{P}_end')
    if diag: stamp_begin(A)
    A('s_load_dwordx4 s[4:7], s[0:1], 0\ns_load_dwordx2 s[16:17], s[0:1], 16\ns_load_dwordx2 s[18:19], s[0:1], 40')
    A('v_lshrrev_b32 v2, 6, v0\nv_and_b32 v1, 63, v0\ns_nop 0\nv_readfirstlane_b32 s20, v2')
    A('v_and_b32 v2, 15, v1\nv_lshrrev_b32 v3, 4, v1')
    A(f's_cmp_ge_u32 s2, 160\ns_cbranch_scc1 L_{P}_aux')
    A('s_and_b32 s21, s2, 7\ns_lshr_b32 s22, s2, 3')
    A('s_cmp_ge_u32 s22, 10\ns_cselect_b32 s23, 1, 0\ns_mul_i32 s24, s23, 10\ns_sub_u32 s24, s22, s24')
    A('s_lshl_b32 s25, s20, 1\nv_lshrrev_b32 v4, 5, v1\nv_add_u32 v4, s25, v4\nv_and_b32 v4, 3, v4\nv_lshlrev_b32 v4, 1, v4')
    A('v_and_b32 v5, 7, v1\nv_xor_b32 v4, v4, v5\nv_lshlrev_b32 v4, 4, v4')
    A('v_lshrrev_b32 v5, 3, v1\nv_lshl_add_u32 v4, v5, 10, v4')
    A('s_mul_i32 s25, s24, 400\ns_lshl_b32 s26, s20, 3\ns_add_u32 s25, s25, s26\ns_sub_u32 s25, s25, 28\ns_lshl_b32 s25, s25, 10')
    A('s_lshl_b32 s26, s21, 7\ns_add_u32 s25, s25, s26\nv_add_u32 v4, s25, v4')
    A('s_mul_i32 s25, s23, 4096000\ns_lshl_b32 s27, s20, 10')
    A('s_waitcnt lgkmcnt(0)')
    A('s_add_u32 s8, s4, s25\ns_addc_u32 s9, s5, 0\ns_mov_b32 s10, 4096000\ns_mov_b32 s11, 0x20000')
    for j in range(14):
        A(f's_add_u32 m0, s27, {j*4096}')
        if j==13: A(f's_cmp_ge_u32 s20, 2\ns_cbranch_scc1 L_{P}_skip')
        else: A('s_nop 0')
        A('buffer_load_dwordx4 v4, s[8:11], 0 offen lds')
        if j<13: A('v_add_u32 v4, 0x8000, v4')
    A(f'L_{P}_skip:')
    A(f's_add_u32 s12, s18, {XH_OFF}\ns_addc_u32 s13, s19, 0\ns_mov_b32 s14, {XH_BYTES}\ns_mov_b32 s15, 0x20000')
    TW,RD,OP,DD,PK=16,48,112,176,48
    A('v_lshrrev_b32 v5, 1, v2\nv_lshl_add_u32 v5, v5, 1, 1\nv_cvt_f32_u32 v5, v5')
    A(f'v_and_b32 v6, 1, v2\nv_cvt_f32_u32 v6, v6\nv_mul_f32 v6, 0x3e800000, v6')
    A('v_lshlrev_b32 v7, 3, v3\nv_cvt_f32_u32 v7, v7')
    for cbk in range(4):
        A(f'v_add_f32 v8, {hex(f2u(16.0*cbk))}, v5\nv_mul_f32 v8, {hex(f2u(1/128))}, v8')
        for K in range(2):
            A(f'v_add_f32 v9, {hex(f2u(32.0*K))}, v7\nv_fma_f32 v9, v9, v8, v6')
            for e in range(8):
                A(f'v_cos_f32 v{DD+e}, v9')
                if e<7: A('v_add_f32 v9, v9, v8')
            A('s_nop 0')
            for j in range(4): A(f'v_cvt_pk_bf16_f32 v{TW+4*(2*cbk+K)+j}, v{DD+2*j}, v{DD+2*j+1}')
    A('v_bfe_u32 v5, v2, 1, 2\nv_and_b32 v6, 1, v2\nv_lshrrev_b32 v7, 3, v2')
    A('v_mul_u32_u24 v8, 100, v5\nv_add_u32 v8, v8, v6\nv_lshl_add_u32 v8, v3, 4, v8\nv_lshlrev_b32 v8, 7, v8')
    A('s_lshl_b32 s25, s20, 1\nv_add_u32 v9, s25, v7')
    for h in range(4):
        A(f'v_add_u32 v14, {h}, v5\nv_and_b32 v14, 3, v14\nv_lshlrev_b32 v14, 1, v14\nv_xor_b32 v14, v14, v9\nv_lshl_add_u32 v{10+h}, v14, 4, v8')
    A(f'v_mul_u32_u24 v14, {2*327680>>4}, v3\nv_lshl_add_u32 v14, v7, 4, v14\nv_and_b32 v15, 7, v2\nv_add_u32 v14, v14, v15\nv_lshlrev_b32 v14, 4, v14')
    A('s_mul_i32 s28, s23, 163840\ns_lshl_b32 s25, s21, 1\ns_lshr_b32 s26, s20, 1\ns_add_u32 s25, s25, s26\ns_mul_i32 s25, s25, 10240\ns_add_u32 s28, s28, s25')
    A('s_lshr_b32 s25, s24, 1\ns_lshl_b32 s25, s25, 11\ns_add_u32 s28, s28, s25\ns_and_b32 s25, s20, 1\ns_lshl_b32 s25, s25, 9\ns_add_u32 s28, s28, s25')
    A('s_and_b32 s25, s24, 1\ns_lshl_b32 s25, s25, 7\ns_add_u32 s28, s28, s25')
    A('s_mov_b32 s30, 0x05040100\ns_mov_b32 s31, 0x07060302')
    A('s_waitcnt vmcnt(0)\ns_barrier')
    if diag: stamp_mid(A,0); A('s_waitcnt lgkmcnt(0)')
    for K in range(2):
        for e in range(8):
            A(f'ds_read_b128 {vr(RD+32*K+4*e)}, v{10+(e>>1)} offset:{(64*K+2*e)*128}')
    for K in range(2):
        for u in range(4):
            A(f's_waitcnt lgkmcnt({14-8*K-2*u})')
            for c in range(8):
                A(f'v_perm_b32 v{OP+32*K+4*c+u}, v{RD+32*K+4*(2*u+1)+c//2}, v{RD+32*K+4*(2*u)+c//2}, s{30+(c&1)}')
    A('s_nop 1')
    def mf(cbk):
        o=[]; D=DD+32*(cbk&1)
        for c in range(8): o.append(f'v_mfma_f32_16x16x32_bf16 {vr(D+4*c)}, {vr(TW+8*cbk)}, {vr(OP+4*c)}, 0')
        for c in range(8): o.append(f'v_mfma_f32_16x16x32_bf16 {vr(D+4*c)}, {vr(TW+8*cbk+4)}, {vr(OP+32+4*c)}, {vr(D+4*c)}')
        return o
    def post(cbk):
        o=[]; D=DD+32*(cbk&1)
        for i in range(4):
            r=PK+16*cbk+4*i
            for u in range(4): o.append(f'v_cvt_pk_bf16_f32 v{r+u}, v{D+8*u+i}, v{D+8*u+4+i}')
            o.append(f's_add_u32 s29, s28, {(8*cbk+(i>>1))*327680}')
            o.append(f'buffer_store_dwordx4 {vr(r)}, v14, s[12:15], s29 offen offset:{(i&1)*1024} {xsc}')
        return o
    for x in mf(0): A(x)
    for cbk in range(4):
        m=mf(cbk+1) if cbk<3 else []
        p=post(cbk)
        if m:
            for x in m[:4]: A(x)
            A('s_nop 3')
            m=m[4:]
            while m or p:
                for _ in range(2):
                    if p: A(p.pop(0))
                if m: A(m.pop(0))
        else:
            A('s_nop 7')
            for x in p: A(x)
    if diag:
        stamp_mid(A,1); stamp_mid(A,2)
        A('s_waitcnt vmcnt(0)\ns_barrier')
        A(f's_cmp_lg_u32 s20, 0\ns_cbranch_scc1 L_{P}_end')
        stamp_end(A,18,0,P)
    A('s_endpgm')
    A(f'L_{P}_aux:')
    A(f's_cmp_ge_u32 s2, 176\ns_cbranch_scc1 L_{P}_pf')
    A('s_sub_u32 s21, s2, 160\ns_lshr_b32 s22, s21, 1\ns_and_b32 s23, s21, 1')
    A('s_lshl_b32 s24, s22, 6\ns_lshl_b32 s25, s23, 1\ns_add_u32 s24, s24, s25\ns_lshl_b32 s24, s24, 10\ns_lshl_b32 s25, s20, 8\ns_add_u32 s24, s24, s25')
    A('v_lshlrev_b32 v4, 14, v3\nv_lshl_add_u32 v4, v2, 4, v4\nv_lshlrev_b32 v5, 4, v1')
    A('s_waitcnt lgkmcnt(0)')
    A('s_mov_b32 s8, s16\ns_mov_b32 s9, s17\ns_mov_b32 s10, 524288\ns_mov_b32 s11, 0x20000')
    A(f's_add_u32 s12, s18, {WO_OFF}\ns_addc_u32 s13, s19, 0\ns_mov_b32 s14, 524288\ns_mov_b32 s15, 0x20000')
    for e in range(8):
        if e%2==0: A(f's_add_u32 s25, s24, {(e>>1)*4096}')
        A(f'buffer_load_dwordx4 {vr(16+4*e)}, v4, s[8:11], s25 offen offset:{(e&1)*1024}')
    A('s_mov_b32 s30, 0x05040100\ns_mov_b32 s31, 0x07060302')
    A('s_lshl_b32 s26, s20, 17\ns_lshl_b32 s27, s21, 13\ns_add_u32 s26, s26, s27\ns_add_u32 s27, s26, 4096')
    A('s_waitcnt vmcnt(0)')
    for nb in range(8):
        for u in range(4):
            A(f'v_perm_b32 v{48+4*nb+u}, v{16+4*(2*u+1)+nb//2}, v{16+4*(2*u)+nb//2}, s{30+(nb&1)}')
        A(f'buffer_store_dwordx4 {vr(48+4*nb)}, v5, s[12:15], s{26+nb//4} offen offset:{(nb%4)*1024}')
    A(f's_branch L_{P}_fin')
    A(f'L_{P}_pf:')
    if prefetch:
        A('s_sub_u32 s21, s2, 176\ns_mul_i32 s21, s21, 196608\nv_lshlrev_b32 v4, 4, v0')
        A('s_waitcnt lgkmcnt(0)')
        A('s_mov_b32 s8, s6\ns_mov_b32 s9, s7\ns_mov_b32 s10, 15728640\ns_mov_b32 s11, 0x20000')
        for j in range(48):
            A(f'buffer_load_dwordx4 {vr(16+4*j)}, v4, s[8:11], s21 offen\ns_add_u32 s21, s21, 4096')
        A('s_waitcnt vmcnt(0)')
    A(f'L_{P}_fin:')
    if diag:
        A('s_waitcnt vmcnt(0) lgkmcnt(0)')
        stamp_mid(A,0); stamp_mid(A,1); stamp_mid(A,2)
        A(f's_cmp_lg_u32 s20, 0\ns_cbranch_scc1 L_{P}_end')
        stamp_end(A,18,0,P)
    A(f'L_{P}_end:\ns_endpgm')
    return dict(name=name, launch=f'; @launch kernel={name} grid=(256,1,1) block=(256,1,1) lds={LDS}', text=A.text(), kd=kd(name,256))
if __name__=="__main__":
    open("k1_test.s","w").write(combine([gen(diag=True)]))
```

```python
from common import *
RS=1056
RAWW=15*RS
RAWB=4*RAWW
WH0=2*RAWB
WHB=16*RS
LDS=WH0+2*WHB
def gen(name='k2_kernel', xg=8, diag=False, hsc='', pace=None, prio=(0,1), noG=False, noH=False, nostore=False):
    A=Asm(); head(A,name)
    P=name
    A(f's_cmp_ge_u32 s2, 256\ns_cbranch_scc1 L_{P}_end')
    if diag: stamp_begin(A)
    A('s_load_dwordx2 s[4:5], s[0:1], 8\ns_load_dwordx2 s[6:7], s[0:1], 40')
    A('v_lshrrev_b32 v2, 6, v0\nv_and_b32 v1, 63, v0\ns_nop 0\nv_readfirstlane_b32 s20, v2')
    import math
    lg=int(math.log2(xg)); nxg=16//xg; lnx=int(math.log2(nxg)); cper=32//xg
    A('s_and_b32 s21, s2, 7\ns_lshr_b32 s22, s2, 3')
    A(f's_and_b32 s23, s21, {nxg-1}\ns_lshl_b32 s23, s23, {lg}\ns_and_b32 s24, s22, {xg-1}\ns_add_u32 s23, s23, s24')
    A(f's_lshr_b32 s24, s21, {lnx}\ns_mul_i32 s24, s24, {cper}\ns_lshr_b32 s25, s22, {lg}\ns_add_u32 s24, s24, s25')
    A('v_and_b32 v2, 15, v1\nv_lshrrev_b32 v3, 4, v1')
    A(f's_cmp_ge_u32 s20, 4\ns_cbranch_scc1 L_{P}_helper')
    if prio[0]: A(f's_setprio {prio[0]}')
    WR,WI,WN,XR,ACC=8,24,40,56,96
    A('s_and_b32 s26, s20, 1\ns_lshr_b32 s27, s20, 1')
    A('s_lshl_b32 s28, s23, 1\ns_add_u32 s28, s28, s26')
    A(f's_lshl_b32 s29, s28, 1\ns_add_u32 s29, s29, s27\ns_mul_i32 s29, s29, {160*1024}')
    A('v_lshlrev_b32 v4, 4, v1')
    A(f's_mul_i32 s30, s26, {8*RS}\ns_add_u32 s30, s30, {WH0}\nv_add_u32 v5, s30, v4')
    A('s_waitcnt lgkmcnt(0)')
    A(f's_add_u32 s8, s6, s29\ns_addc_u32 s9, s7, 0\ns_mov_b32 s10, {160*1024}\ns_mov_b32 s11, 0x20000')
    if XH_OFF: A(f's_add_u32 s8, s8, {XH_OFF}\ns_addc_u32 s9, s9, 0')
    A(f's_add_u32 s12, s6, {HH_OFF}\ns_addc_u32 s13, s7, 0\ns_mov_b32 s14, {HH_BYTES}\ns_mov_b32 s15, 0x20000')
    A('s_mov_b32 s32, 0')
    def xload(b):
        return [f'buffer_load_dwordx4 {vr(XR+8*b)}, v4, s[8:11], s32 offen',
                f'buffer_load_dwordx4 {vr(XR+8*b+4)}, v4, s[8:11], s32 offen offset:1024']
    for b in range(5):
        for x in xload(b): A(x)
        A('s_add_u32 s32, s32, 2048')
    for i in range(160): A(f'v_mov_b32 v{ACC+i}, 0')
    A(f's_mov_b32 s33, 0x80008000\ns_mov_b32 s40, 16\ns_mov_b32 s41, {WHB}')
    def wread(c): return [f'ds_read_b128 {vr(WR+4*c)}, v5 offset:{c*RS}', f'ds_read_b128 {vr(WI+4*c)}, v5 offset:{(4+c)*RS}']
    A('s_barrier')
    if diag: stamp_mid(A,0); A('s_memtime s[88:89]\ns_waitcnt lgkmcnt(0)')
    for c in range(4):
        for x in wread(c): A(x)
    A(f'.p2align 6\nL_{P}_gl:')
    def acc(b,c,p): return vr(ACC+((b*4+c)*2+p)*4)
    for b in range(5):
        if b==4:
            A('v_add_u32 v5, s41, v5\ns_sub_u32 s41, 0, s41')
            A('s_barrier')
        for c in range(4):
            xr,xi=vr(XR+8*b),vr(XR+8*b+4)
            w=[]
            if c==0: w.append('vmcnt(8)')
            if b==0: w.append(f'lgkmcnt({2*(3-c)})')
            if w: A('s_waitcnt '+' '.join(w))
            m=[f'v_mfma_f32_16x16x32_bf16 {acc(b,c,0)}, {xr}, {vr(WR+4*c)}, {acc(b,c,0)}',
               f'v_mfma_f32_16x16x32_bf16 {acc(b,c,1)}, {xr}, {vr(WI+4*c)}, {acc(b,c,1)}',
               f'v_mfma_f32_16x16x32_bf16 {acc(b,c,1)}, {xi}, {vr(WR+4*c)}, {acc(b,c,1)}',
               f'v_mfma_f32_16x16x32_bf16 {acc(b,c,0)}, {xi}, {vr(WN+4*c)}, {acc(b,c,0)}']
            if noG: m=['s_nop 0']*4
            fill=[[],[],[],[]]
            if b==0:
                fill[0]+= [f'v_xor_b32 v{WN+4*c+j}, s33, v{WI+4*c+j}' for j in (0,1)]
                fill[1]+= [f'v_xor_b32 v{WN+4*c+j}, s33, v{WI+4*c+j}' for j in (2,3)]
                fill[2]+= ['s_nop 0']
            if c==3:
                fill[1].append(xload(b)[0])
                fill[3]+= [xload(b)[1], 's_add_u32 s32, s32, 2048']
            if b==4:
                fill[2].append(wread(c)[0]); fill[3].insert(0,wread(c)[1])
            for j in range(4):
                A(m[j])
                for x in fill[j]: A(x)
    A(f's_sub_u32 s40, s40, 1\ns_cmp_lg_u32 s40, 0\ns_cbranch_scc1 L_{P}_gl')
    if diag: stamp_mid(A,1); A('s_memtime s[82:83]\ns_waitcnt lgkmcnt(0)\ns_sub_u32 s88, s82, s88')
    A(f'v_mul_u32_u24 v6, {4*HT>>4}, v3\nv_add_u32 v6, v6, v2\nv_lshlrev_b32 v6, 4, v6')
    A(f's_mul_i32 s34, s27, {80*HT}\ns_lshl_b32 s35, s28, 12\ns_add_u32 s34, s34, s35\ns_lshl_b32 s35, s24, 8\ns_add_u32 s34, s34, s35')
    A('s_waitcnt vmcnt(0) lgkmcnt(0)')
    t=0
    for b in range(5):
        for i in range(4):
            r=8+4*(t%20); t+=1
            for c in range(4):
                A(f'v_cvt_pk_bf16_f32 v{r+c}, v{ACC+((b*4+c)*2)*4+i}, v{ACC+((b*4+c)*2+1)*4+i}')
            A(f's_add_u32 s35, s34, {(b*16+i)*HT}')
            if not nostore: A(f'buffer_store_dwordx4 {vr(r)}, v6, s[12:15], s35 offen {hsc}')
    if diag:
        stamp_mid(A,2)
        A('s_waitcnt vmcnt(0)')
        A(f's_cmp_lg_u32 s20, 0\ns_cbranch_scc1 L_{P}_end')
        stamp_end(A,6,1,P)
    A('s_endpgm')
    A(f'L_{P}_helper:')
    if prio[1]: A(f's_setprio {prio[1]}')
    A('s_sub_u32 s20, s20, 4')
    A('v_lshrrev_b32 v4, 3, v1\nv_lshlrev_b32 v4, 11, v4\nv_and_b32 v5, 7, v1\nv_lshl_add_u32 v4, v5, 4, v4')
    A('s_lshl_b32 s25, s24, 7\ns_lshl_b32 s26, s20, 14\ns_add_u32 s25, s25, s26\nv_add_u32 v4, s25, v4')
    for p in range(15): A(f's_mov_b32 s{44+p}, {(p<<20) + 4096 - (p%4)*RS}')
    A(f's_mul_i32 s30, s20, {RAWW}')
    A('s_waitcnt lgkmcnt(0)')
    A(f's_sub_u32 s8, s4, 4096\ns_subb_u32 s9, s5, 0\ns_mov_b32 s10, {15728640+4096}\ns_mov_b32 s11, 0x20000')
    def dma(p, base):
        o=[]
        if p%4==0: o+= [f's_add_u32 m0, {base}, {p*RS}', 's_nop 0']
        o.append(f'buffer_load_dwordx4 v4, s[8:11], s{44+p} offen offset:{(p%4)*RS} lds')
        return o
    for p in range(15):
        for x in dma(p,'s30'): A(x)
    A('v_add_u32 v4, 0x10000, v4')
    A(f's_add_u32 s31, s30, {RAWB}')
    A('v_lshrrev_b32 v8, 2, v2\nv_and_b32 v9, 3, v2')
    A('v_lshrrev_b32 v10, 1, v3\nv_and_b32 v11, 1, v3')
    A('v_lshl_add_u32 v12, v10, 3, v8')
    A('v_lshlrev_b32 v13, 7, v11\nv_lshl_add_u32 v13, v9, 3, v13\nv_add_u32 v13, s30, v13')
    A(f'v_mul_u32_u24 v6, {RS}, v12\nv_add_u32 v6, v6, v13')
    A(f'v_add_u32 v12, 4, v12\nv_min_u32 v12, 14, v12\nv_mul_u32_u24 v7, {RS}, v12\nv_add_u32 v7, v7, v13')
    A(f'v_lshl_add_u32 v5, v3, 2, v9\nv_mul_u32_u24 v5, {RS}, v5\nv_lshl_add_u32 v5, v8, 4, v5')
    A(f's_lshl_b32 s25, s20, 8\ns_add_u32 s25, s25, {WH0}\nv_add_u32 v5, s25, v5')
    A('v_lshrrev_b32 v12, 1, v8\ns_lshl_b32 s25, s23, 1\nv_add_u32 v12, s25, v12\nv_lshl_add_u32 v12, v12, 1, 1')
    A('v_and_b32 v13, 1, v8\nv_lshlrev_b32 v13, 5, v13')
    A('v_lshlrev_b32 v14, 3, v10')
    A(f's_mov_b32 s26, {f2u(1/128)}')
    for e in range(8):
        A(f'v_add_u32 v15, {e}, v14\nv_mad_u32_u24 v15, v15, v12, v13\nv_and_b32 v15, 127, v15\nv_cvt_f32_u32 v15, v15\nv_mul_f32 v15, s26, v15\nv_cos_f32 v{24+e}, v15')
    A('s_cmp_lt_u32 s24, 8\ns_cselect_b32 s27, 2.0, 1.0')
    for e in range(8): A(f'v_mul_f32 v{24+e}, s27, v{24+e}')
    A('v_cmp_eq_u32 vcc, 1, v10\ns_nop 1\nv_cndmask_b32 v31, v31, 0, vcc')
    for j in range(4): A(f'v_cvt_pk_bf16_f32 v{24+j}, v{24+2*j}, v{25+2*j}')
    A('v_cmp_eq_u32 vcc, v9, v11\ns_nop 1')
    for j in range(4): A(f'v_cndmask_b32 v{16+j}, 0, v{24+j}, vcc')
    A('v_add_u32 v11, 2, v11\nv_cmp_eq_u32 vcc, v9, v11\ns_nop 1')
    for j in range(4): A(f'v_cndmask_b32 v{20+j}, 0, v{24+j}, vcc')
    A(f's_mov_b32 s40, 16\ns_mov_b32 s41, {WHB}\ns_mov_b32 s42, {RAWB}')
    A(f'.p2align 6\nL_{P}_hl:')
    A(f's_cmp_gt_u32 s40, 1\ns_cselect_b32 s10, {15728640+4096}, 0')
    A('s_waitcnt vmcnt(0)')
    BO,DO,PK=32,96,128
    units=[(tb,cp) for tb in range(4) for cp in range(4)]
    def trr(u):
        tb,cp=units[u]; r=BO+4*u
        return [f'ds_read_b64_tr_b16 {vr(r,2)}, v6 offset:{cp*256+tb*32}', f'ds_read_b64_tr_b16 {vr(r+2,2)}, v7 offset:{cp*256+tb*32}']
    LA=6
    seq=[]
    out=[]
    def lds(tag,txt): seq.append(tag); out.append(txt)
    def waitfor(tag):
        n=len(seq)-1-max(i for i,t in enumerate(seq) if t==tag)
        out.append(f's_waitcnt lgkmcnt({min(n,15)})')
    for u in range(LA):
        for x in trr(u): lds(('r',u),x)
    dq=list(range(15))
    def cvts(d):
        tb=d//2; h=d%2
        return [f'v_cvt_pk_bf16_f32 v{PK+4*tb+2*h}, v{DO+4*d}, v{DO+4*d+1}', f'v_cvt_pk_bf16_f32 v{PK+4*tb+2*h+1}, v{DO+4*d+2}, v{DO+4*d+3}']
    for u in range(16):
        tb,cp=units[u]; d=u//2
        waitfor(('r',u))
        if cp%2==0: out.append(f'v_mfma_f32_16x16x32_bf16 {vr(DO+4*d)}, v[16:19], {vr(BO+4*u)}, 0')
        else: out.append(f'v_mfma_f32_16x16x32_bf16 {vr(DO+4*d)}, v[20:23], {vr(BO+4*u)}, {vr(DO+4*d)}')
        if u+LA<16:
            for x in trr(u+LA): lds(('r',u+LA),x)
        if dq:
            if pace is not None: out.append(f's_waitcnt vmcnt({pace})')
            out+=dma(dq.pop(0),'s31')
        if u%2==1 and d>=2:
            out+=cvts(d-2)
            if (d-2)%2==1: lds(('w',d),f'ds_write_b128 v5, {vr(PK+4*((d-2)//2))} offset:{((d-2)//2)*64}')
    out.append('s_nop 3')
    out+=cvts(6); out.append('s_nop 1'); out+=cvts(7)
    out.append(f'ds_write_b128 v5, {vr(PK+12)} offset:192')
    if noH: out=[x for x in out if 'buffer_load' in x or 'm0' in x or 's_nop' in x or 'vmcnt' in x]
    for x in out: A(x)
    A('v_add_u32 v4, 0x10000, v4')
    A('v_add_u32 v6, s42, v6\nv_add_u32 v7, s42, v7\ns_sub_u32 s31, s31, s42\ns_sub_u32 s42, 0, s42')
    A('v_add_u32 v5, s41, v5\ns_sub_u32 s41, 0, s41')
    A('s_sub_u32 s40, s40, 1\ns_cmp_lg_u32 s40, 0')
    A('s_waitcnt lgkmcnt(0)\ns_barrier')
    A(f's_cbranch_scc1 L_{P}_hl')
    A(f'L_{P}_end:\ns_endpgm')
    return dict(name=name, launch=f'; @launch kernel={name} grid=(256,1,1) block=(512,1,1) lds={LDS}', text=A.text(), kd=kd(name,256))
if __name__=="__main__":
    open("k2_test.s","w").write(combine([gen(diag=True)]))
```

```python
from common import *
import math
LDS=65536
def gen(name='k3_kernel', diag=False, osc='', prio=(1,0), NR=20):
    A=Asm(); head(A,name); P=name
    A(f's_cmp_ge_u32 s2, 160\ns_cbranch_scc1 L_{P}_end')
    if diag: stamp_begin(A)
    A('s_load_dwordx2 s[4:5], s[0:1], 24\ns_load_dwordx2 s[6:7], s[0:1], 40')
    A('v_lshrrev_b32 v2, 6, v0\nv_and_b32 v1, 63, v0\ns_nop 0\nv_readfirstlane_b32 s20, v2')
    A('v_and_b32 v2, 15, v1\nv_lshrrev_b32 v3, 4, v1\nv_lshlrev_b32 v4, 4, v1')
    A(f's_cmp_ge_u32 s20, 4\ns_cbranch_scc1 L_{P}_p')
    if prio[0]: A(f's_setprio {prio[0]}')
    TW,HD,DD,TM,PK=16,48,176,208,240
    A(f's_mul_i32 s21, s2, {HT}\ns_add_u32 s21, s21, {HH_OFF}')
    A('v_lshlrev_b32 v5, 14, v3\nv_lshl_add_u32 v5, v2, 4, v5\ns_lshl_b32 s22, s20, 8\nv_add_u32 v5, s22, v5')
    A('s_waitcnt lgkmcnt(0)')
    A('s_add_u32 s8, s6, s21\ns_addc_u32 s9, s7, 0\ns_mov_b32 s10, 131072\ns_mov_b32 s11, 0x20000')
    for st in range(2):
        for Kc in range(2):
            for ph in range(4):
                A(f's_mov_b32 s22, {(16*Kc+ph)*4096}')
                for fg in range(2):
                    Q=(st*2+fg)*2+Kc
                    A(f'buffer_load_dwordx4 {vr(HD+16*Q+4*ph)}, v5, s[8:11], s22 offen offset:{fg*2048+st*1024}')
    A('v_and_b32 v6, 3, v2\nv_lshrrev_b32 v7, 2, v2\nv_lshl_add_u32 v6, v6, 2, v7\nv_cvt_f32_u32 v6, v6')
    A('v_lshl_add_u32 v7, v3, 3, 1\nv_cvt_f32_u32 v7, v7')
    c=-math.log2(math.e)/32
    A(f's_mov_b32 s24, {hex(f2u(c))}\ns_mov_b32 s25, {hex(f2u(-c))}')
    for tb in range(4):
        A(f'v_add_f32 v8, {hex(f2u(14.0+16*tb))}, v6\nv_mul_f32 v8, {hex(f2u(1/128))}, v8\nv_add_f32 v9, v8, v8')
        for Kc in range(2):
            A(f'v_add_f32 v10, {hex(f2u(32.0*Kc))}, v7\nv_mul_f32 v10, v10, v8')
            for u in range(4):
                A(f'v_cos_f32 v{DD+2*u}, v10\nv_sin_f32 v{DD+2*u+1}, v10')
                if u<3: A('v_add_f32 v10, v10, v9')
            A('s_nop 0')
            for u in range(4):
                A(f'v_mul_f32 v{DD+2*u}, s24, v{DD+2*u}\nv_mul_f32 v{DD+2*u+1}, s25, v{DD+2*u+1}')
                A(f'v_cvt_pk_bf16_f32 v{TW+4*(2*tb+Kc)+u}, v{DD+2*u}, v{DD+2*u+1}')
    A('s_lshl_b32 s22, s20, 12\nv_add_u32 v6, s22, v4')
    A(f's_mov_b32 s26, {hex(f2u(60.0))}')
    def swaps(st):
        o=[]
        for Q in range(4*st,4*st+4):
            b=HD+16*Q
            for a in range(4):
                for j in range(a+1,4): o.append(f'v_swap_b32 v{b+4*a+j}, v{b+4*j+a}')
        return o
    def mf(rho,tb):
        st=rho>>1; ja=2*(rho&1); D=DD+16*(tb&1); o=[]
        for Kc in range(2):
            for fg in range(2):
                for jj in range(2):
                    Q=(st*2+fg)*2+Kc; d=D+8*fg+4*jj
                    o.append(f'v_mfma_f32_16x16x32_bf16 {vr(d)}, {vr(HD+16*Q+4*(ja+jj))}, {vr(TW+4*(2*tb+Kc))}, {vr(d) if Kc else 0}')
        return o
    def gate(rho,tb):
        D=DD+16*(tb&1); o=[]
        F=[D+x for x in range(8)]; G=[D+8+x for x in range(8)]; T=[TM+x for x in range(8)]
        for x in range(8): o.append(f'v_min_f32 v{F[x]}, s26, v{F[x]}')
        for x in range(8): o.append(f'v_exp_f32 v{G[x]}, v{G[x]}')
        for x in range(8): o.append(f'v_exp_f32 v{F[x]}, v{F[x]}')
        for x in range(0,8,2): o.append(f'v_pk_add_f32 {vr(T[x],2)}, {vr(F[x],2)}, 1.0 op_sel_hi:[1,0]')
        for x in range(0,8,2): o.append(f'v_pk_fma_f32 {vr(G[x],2)}, {vr(T[x],2)}, {vr(G[x],2)}, {vr(T[x],2)}')
        for x in range(0,8,2): o.append(f'v_pk_add_f32 {vr(F[x],2)}, {vr(F[x],2)}, 1.0 op_sel_hi:[1,0] neg_lo:[1,0] neg_hi:[1,0]')
        for x in range(8): o.append(f'v_rcp_f32 v{G[x]}, v{G[x]}')
        for x in range(0,8,2): o.append(f'v_pk_mul_f32 {vr(F[x],2)}, {vr(F[x],2)}, {vr(G[x],2)}')
        r=PK+4*(tb&1)
        for i in range(4): o.append(f'v_cvt_pk_bf16_f32 v{r+i}, v{F[i]}, v{F[4+i]}')
        o.append(f'ds_write_b128 v6, {vr(r)} offset:{rho*16384+tb*1024}')
        return o
    units=[(rho,tb) for rho in range(4) for tb in range(4)]
    A('s_waitcnt vmcnt(16)')
    if diag: stamp_mid(A,0); A('s_waitcnt lgkmcnt(0)')
    for x in swaps(0): A(x)
    A('s_nop 1')
    for x in mf(0,0): A(x)
    A('s_nop 7')
    for n,(rho,tb) in enumerate(units):
        g=gate(rho,tb)
        if n==7:
            A('s_waitcnt vmcnt(0)')
            for x in swaps(1): A(x)
        m=mf(*units[n+1]) if n<15 else []
        k=0
        for idx,x in enumerate(g):
            A(x)
            if m and idx%4==3: A(m.pop(0))
        assert not m
        if tb==3:
            A('s_waitcnt lgkmcnt(0)\ns_barrier')
    A('s_endpgm')
    A(f'L_{P}_p:')
    if prio[1]: A(f's_setprio {prio[1]}')
    A('s_sub_u32 s20, s20, 4')
    WR,ZR,ACC=8,8+4*NR,128
    assert ZR+32<=128
    A(f's_lshl_b32 s21, s20, 17\ns_add_u32 s21, s21, {WO_OFF}')
    A('s_waitcnt lgkmcnt(0)')
    A('s_add_u32 s8, s6, s21\ns_addc_u32 s9, s7, 0\ns_mov_b32 s10, 131072\ns_mov_b32 s11, 0x20000')
    A('s_mov_b32 s12, s4\ns_mov_b32 s13, s5\ns_mov_b32 s14, 8192000\ns_mov_b32 s15, 0x20000')
    korder=[2*(gw+4*(rho>>1))+(rho&1) for rho in range(4) for gw in range(4)]
    def wload(f):
        o=[]; kap=korder[f//8]; nb=f%8
        if nb%4==0: o.append(f's_mov_b32 s22, {kap*8192+(nb//4)*4096}')
        o.append(f'buffer_load_dwordx4 {vr(WR+4*(f%NR))}, v4, s[8:11], s22 offen offset:{(nb%4)*1024}')
        return o
    for f in range(NR):
        for x in wload(f): A(x)
    A('s_lshr_b32 s23, s2, 4\ns_cmp_ge_u32 s23, 5\ns_cselect_b32 s24, 1, 0\ns_mul_i32 s25, s24, 5\ns_sub_u32 s23, s23, s25')
    A('s_lshl_b32 s23, s23, 3\ns_bfe_u32 s25, s2, 0x30001\ns_add_u32 s23, s23, s25\ns_mul_i32 s23, s23, 100\ns_and_b32 s25, s2, 1\ns_add_u32 s23, s23, s25')
    A('s_mul_i32 s24, s24, 4000\ns_add_u32 s23, s23, s24\ns_lshl_b32 s23, s23, 10\ns_lshl_b32 s24, s20, 8\ns_add_u32 s23, s23, s24')
    A('v_lshlrev_b32 v5, 11, v3\nv_lshl_add_u32 v5, v2, 4, v5')
    A('v_cmp_gt_u32 vcc, 2, v3\nv_mov_b32 v6, 0x7f000000\ns_nop 0\nv_cndmask_b32 v6, v6, v5, vcc')
    def zread(s): return [f'ds_read_b128 {vr(ZR+16*(s&1)+4*tb)}, v4 offset:{s*4096+tb*1024}' for tb in range(4)]
    A('s_barrier')
    if diag: stamp_mid(A,0); A('s_waitcnt lgkmcnt(0)')
    for x in zread(0): A(x)
    for s in range(16):
        for nb in range(8):
            f=s*8+nb
            issued=min(128, f+NR)
            w=[f'vmcnt({issued-f-1})']
            if nb==0: w.append('lgkmcnt(0)')
            A('s_waitcnt '+' '.join(w))
            for tb in range(4):
                a=ACC+(tb*8+nb)*4
                A(f'v_mfma_f32_16x16x32_bf16 {vr(a)}, {vr(ZR+16*(s&1)+4*tb)}, {vr(WR+4*(f%NR))}, {vr(a) if s else 0}')
                if s<15:
                    zp = 5 if s%4==3 else 2
                    if nb==zp:
                        if tb==0 and s%4==3: A('s_barrier')
                        A(zread(s+1)[tb])
            if f+NR<128:
                for x in wload(f+NR): A(x)
    if diag: stamp_mid(A,1)
    A('s_nop 7')
    t=0
    for tb in range(4):
        for i in range(4):
            if tb==3 and i>0: continue
            r=8+4*t; t+=1
            for u in range(4):
                A(f'v_cvt_pk_bf16_f32 v{r+u}, v{ACC+(tb*8+2*u)*4+i}, v{ACC+(tb*8+2*u+1)*4+i}')
            A(f's_add_u32 s24, s23, {(16*tb+4*i)*2048}')
            A(f'buffer_store_dwordx4 {vr(r)}, {"v6" if tb==3 else "v5"}, s[12:15], s24 offen {osc}')
    if diag:
        stamp_mid(A,2)
        A('s_waitcnt vmcnt(0)')
        A(f's_cmp_lg_u32 s20, 0\ns_cbranch_scc1 L_{P}_end')
        stamp_end(A,6,2,P)
    A(f'L_{P}_end:\ns_endpgm')
    return dict(name=name, launch=f'; @launch kernel={name} grid=(160,1,1) block=(512,1,1) lds={LDS}', text=A.text(), kd=kd(name,256))
if __name__=="__main__":
    open("k3_test.s","w").write(combine([gen(diag=True)]))
```

```python
import common,k1,k2,k3,amp,sys
def mk(prefix, specs, a={}, b={}, c={}, F=10):
    parts=[k1.gen(diag=True,**a),k2.gen(diag=True,**b),k3.gen(diag=True,**c)]
    for i,sp in enumerate(specs):
        g = amp.gen(0,256,0,'max',0) if sp is None else amp.gen(*sp,F)
        open(f'{prefix}{i}.s','w').write(common.combine(parts+[g]))
if __name__=="__main__":
    a=dict(xsc='sc1'); b=dict(hsc='sc1')
    mk('am_a',[None,(2,160,4,'max'),(0,256,4,'max'),(1,256,0,'min'),(1,256,4,'max'),(2,160,0,'min')],a,b)
    mk('am_b',[None,(1,256,1,'max'),(1,256,2,'min'),(1,256,2,'max'),(2,160,1,'max'),(2,160,2,'max')],a,b)
```
